```python
import torch

def _softmax(x, axis=-1):
    return torch.softmax(x, dim=axis)
def _gelu(x):
    return torch.nn.functional.gelu(x, approximate="tanh")
def _silu(x):
    return torch.nn.functional.silu(x)
def _sigmoid(x):
    return torch.sigmoid(x)
def _layernorm(x, axis=-1, eps=1e-5):
    m = x.mean(dim=axis, keepdim=True)
    v = x.var(dim=axis, keepdim=True, unbiased=False)
    return (x - m) / torch.sqrt(v + eps)
def _scatter_add(tgt, idx, src, axis=0):
    return tgt.clone().index_add_(axis, idx, src)
def _segment_sum(src, seg, n):
    out = torch.zeros((n,) + src.shape[1:], dtype=src.dtype)
    return out.index_add_(0, seg, src)
def _pad(x, pw):
    flat = tuple(v for pair in reversed(pw) for v in pair)
    return torch.nn.functional.pad(x, flat)

kernel_name = 'concat_heads__gqa_block_cached__gqa_block_cached__near_ridge'

def setup_inputs():

    _w = (lambda a: (lambda t: t.to(torch.bfloat16) if t.is_floating_point() else t)(torch.as_tensor(a)))
    def _A_setup():
        B, Sq, D = 16, 128, 576
        Hq, Hkv, Sk, Dh = 32, 16, 1024, 128
        assert Hq % Hkv == 0, (Hq, Hkv)
        return {
            "x": _w((lambda *s: torch.randn(*s, dtype=torch.bfloat16) * 0.8)(B, Sq, D)),
            "k_cache": _w((lambda *s: torch.randn(*s, dtype=torch.bfloat16) * 0.8)(B, Hkv, Sk, Dh)),
            "v_cache": _w((lambda *s: torch.randn(*s, dtype=torch.bfloat16) * 0.05)(B, Hkv, Sk, Dh)),
            "wq": _w((lambda *s: torch.randn(*s, dtype=torch.bfloat16) * 0.8)(D, Hq * Dh) * (D ** -0.5)),
            "wo": _w((lambda *s: torch.randn(*s, dtype=torch.bfloat16) * 0.05)(Hq * Dh, D) * ((Hq * Dh) ** -0.5)),
        }
    _A_in = _A_setup()

    def _B_setup():
        B, Sq, D = 16, 128, 576
        Hq, Hkv, Sk, Dh = 32, 16, 1024, 128
        assert Hq % Hkv == 0, (Hq, Hkv)
        return {
            "x": _w((lambda *s: torch.randn(*s, dtype=torch.bfloat16) * 0.8)(B, Sq, D)),
            "k_cache": _w((lambda *s: torch.randn(*s, dtype=torch.bfloat16) * 0.8)(B, Hkv, Sk, Dh)),
            "v_cache": _w((lambda *s: torch.randn(*s, dtype=torch.bfloat16) * 0.05)(B, Hkv, Sk, Dh)),
            "wq": _w((lambda *s: torch.randn(*s, dtype=torch.bfloat16) * 0.8)(D, Hq * Dh) * (D ** -0.5)),
            "wo": _w((lambda *s: torch.randn(*s, dtype=torch.bfloat16) * 0.05)(Hq * Dh, D) * ((Hq * Dh) ** -0.5)),
        }
    _B_in = _B_setup()

    return {
        "A_x": _A_in["x"],
        "A_k_cache": _A_in["k_cache"],
        "A_v_cache": _A_in["v_cache"],
        "A_wq": _A_in["wq"],
        "A_wo": _A_in["wo"],
        "B_x": _B_in["x"],
        "B_k_cache": _B_in["k_cache"],
        "B_v_cache": _B_in["v_cache"],
        "B_wq": _B_in["wq"],
        "B_wo": _B_in["wo"],
    }

def reference(A_x, A_k_cache, A_v_cache, A_wq, A_wo, B_x, B_k_cache, B_v_cache, B_wq, B_wo):
    def _A_ref(x, k_cache, v_cache, wq, wo):
        B, Sq, D = x.shape
        Hq, Dh = 32, 128
        Hkv = k_cache.shape[1]
        rep = Hq // Hkv
        q = (lambda x, *d: x.permute(*d))((x @ wq).reshape(B, Sq, Hq, Dh), 0, 2, 1, 3)
        k = (lambda x, n, axis: torch.repeat_interleave(x, n, dim=axis))(k_cache, rep, axis=1)
        v = (lambda x, n, axis: torch.repeat_interleave(x, n, dim=axis))(v_cache, rep, axis=1)
        scores = torch.einsum("bhqd,bhkd->bhqk", q, k) * (Dh ** -0.5)
        p = _softmax(scores, axis=-1)
        o = torch.einsum("bhqk,bhkd->bhqd", p, v)
        return (lambda x, *d: x.permute(*d))(o, 0, 2, 1, 3).reshape(B, Sq, Hq * Dh) @ wo

    def _B_ref(x, k_cache, v_cache, wq, wo):
        B, Sq, D = x.shape
        Hq, Dh = 32, 128
        Hkv = k_cache.shape[1]
        rep = Hq // Hkv
        q = (lambda x, *d: x.permute(*d))((x @ wq).reshape(B, Sq, Hq, Dh), 0, 2, 1, 3)
        k = (lambda x, n, axis: torch.repeat_interleave(x, n, dim=axis))(k_cache, rep, axis=1)
        v = (lambda x, n, axis: torch.repeat_interleave(x, n, dim=axis))(v_cache, rep, axis=1)
        scores = torch.einsum("bhqd,bhkd->bhqk", q, k) * (Dh ** -0.5)
        p = _softmax(scores, axis=-1)
        o = torch.einsum("bhqk,bhkd->bhqd", p, v)
        return (lambda x, *d: x.permute(*d))(o, 0, 2, 1, 3).reshape(B, Sq, Hq * Dh) @ wo

    a = _A_ref(A_x, A_k_cache, A_v_cache, A_wq, A_wo)
    b = _B_ref(B_x, B_k_cache, B_v_cache, B_wq, B_wo)
    return torch.concatenate([a, b], axis=-1)
```

```python
def rng(base, n):
    return set(range(base, base + n))


def vr(base, n=1, acc=False):
    p = 'a' if acc else 'v'
    if n == 1:
        return f"{p}{base}"
    return f"{p}[{base}:{base + n - 1}]"


ACC = 1000


class E:
    def __init__(self):
        self.out = []
        self.hist = []
        self.lg = []
        self.vm = []
        self.nops = 0

    def raw(self, s):
        self.out.append(s)

    def label(self, s):
        self.out.append(f"{s}:")

    def comment(self, s):
        self.out.append(f"    ; {s}")

    def _push(self, rec):
        self.hist.append(rec)
        if len(self.hist) > 40:
            self.hist.pop(0)

    def nop(self, n):
        while n > 0:
            k = min(n, 16)
            self.out.append(f"    s_nop {k - 1}")
            for _ in range(k):
                self._push(dict(kind='nop'))
            n -= k
            self.nops += 1

    def _auto_wait(self, regs):
        idx = -1
        for i, d in enumerate(self.lg):
            if d & regs:
                idx = i
        vidx = -1
        for i, (t, d) in enumerate(self.vm):
            if d & regs:
                vidx = i
        parts = []
        if vidx >= 0:
            n = len(self.vm) - 1 - vidx
            assert n <= 63
            parts.append(f"vmcnt({n})")
            self.vm = self.vm[vidx + 1:]
        if idx >= 0:
            n = len(self.lg) - 1 - idx
            assert n <= 15, "too many LDS ops outstanding"
            parts.append(f"lgkmcnt({n})")
            self.lg = self.lg[idx + 1:]
        if parts:
            self.out.append("    s_waitcnt " + " ".join(parts))
            self._push(dict(kind='salu'))

    def wait_lgkm0(self, force=False):
        if self.lg or force:
            self.out.append("    s_waitcnt lgkmcnt(0)")
            self._push(dict(kind='salu'))
            self.lg = []

    def wait_vm_tag(self, tag):
        idx = -1
        for i, (t, d) in enumerate(self.vm):
            if t == tag:
                idx = i
        if idx >= 0:
            n = len(self.vm) - 1 - idx
            assert n <= 63
            self.out.append(f"    s_waitcnt vmcnt({n})")
            self._push(dict(kind='salu'))
            self.vm = self.vm[idx + 1:]

    def wait_vm_n(self, n):
        self.out.append(f"    s_waitcnt vmcnt({n})")
        self._push(dict(kind='salu'))
        if len(self.vm) > n:
            self.vm = self.vm[len(self.vm) - n:] if n else []

    def _hazard(self, rec):
        need = 0
        k = rec['kind']
        R = rec.get('r', set())
        W = rec.get('w', set())
        SR = rec.get('sr', set())
        n = len(self.hist)
        for i in range(n - 1, -1, -1):
            p = self.hist[i]
            dist = n - 1 - i
            pk = p['kind']
            req = 0
            if pk in ('valu', 'trans', 'perm', 'rdlane'):
                pw = p.get('w', set())
                psw = p.get('sw', set())
                if k == 'mfma' and pw & R:
                    req = max(req, 2)
                if pk == 'trans' and k in ('valu', 'perm', 'rdlane') and pw & R:
                    req = max(req, 1)
                if k == 'perm' and pw & R:
                    req = max(req, 2)
                if k == 'rdlane' and pw & R:
                    req = max(req, 1)
                if psw & SR:
                    if k in ('valu', 'trans', 'perm'):
                        req = max(req, 2)
                    if k in ('vmem', 'dma'):
                        req = max(req, 5)
            elif pk == 'mfma':
                D = p['w']
                big = 12 if p['passes'] == 8 else 8
                ovl = 10 if p['passes'] == 8 else 6
                war = 7 if p['passes'] == 8 else 3
                if k == 'mfma':
                    if (rec['ab'] & D):
                        req = max(req, big)
                    C = rec['c']
                    if C & D:
                        if not (C == D and rec['passes'] == p['passes']):
                            req = max(req, ovl)
                else:
                    if (R | W) & D:
                        req = max(req, big)
                    if k in ('valu', 'trans', 'perm') and (W & p['c']):
                        req = max(req, war)
            elif pk == 'salu':
                if p.get('m0') and k == 'dma':
                    req = max(req, 1)
            elif pk == 'vmem':
                if p.get('wide') and k in ('valu', 'trans', 'perm') and (W & p.get('data', set())):
                    req = max(req, 2)
            if req > dist:
                need = max(need, req - dist)
        if need:
            self.nop(need)

    def _emit(self, text, rec):
        regs = rec.get('r', set()) | rec.get('w', set())
        if regs:
            self._auto_wait(regs)
        self._hazard(rec)
        self.out.append("    " + text)
        self._push(rec)

    def salu(self, text, m0=False):
        self._emit(text, dict(kind='salu', m0=m0))

    def valu(self, text, w=(), r=(), sr=(), sw=(), kind='valu'):
        self._emit(text, dict(kind=kind, w=set(w), r=set(r), sr=set(sr), sw=set(sw)))

    def trans(self, text, w=(), r=()):
        self.valu(text, w, r, kind='trans')

    def perm(self, a, b):
        self.valu(f"v_permlane32_swap_b32 v{a}, v{b}", w=(a, b), r=(a, b), kind='perm')

    def rdlane(self, text, r=(), sw=()):
        self.valu(text, r=r, sw=sw, kind='rdlane')

    def mfma32(self, d, a, b, c=None):
        D = rng(d, 16)
        AB = rng(a, 4) | rng(b, 4)
        if c == 0 and c is not None:
            cs, C = "0", set()
        else:
            cs, C = vr(d, 16), D
        self._emit(f"v_mfma_f32_32x32x16_bf16 {vr(d,16)}, {vr(a,4)}, {vr(b,4)}, {cs}",
                   dict(kind='mfma', passes=8, w=D, r=AB | C, ab=AB, c=C))

    def mfma16a(self, d, a, b, zero=False):
        D = rng(ACC + d, 4)
        AB = rng(a, 4) | rng(b, 4)
        if zero:
            cs, C = "0", set()
        else:
            cs, C = vr(d, 4, True), D
        self._emit(f"v_mfma_f32_16x16x32_bf16 {vr(d,4,True)}, {vr(a,4)}, {vr(b,4)}, {cs}",
                   dict(kind='mfma', passes=4, w=D, r=AB | C, ab=AB, c=C))

    def _lg_room(self):
        if len(self.lg) >= 15:
            self.out.append("    s_waitcnt lgkmcnt(13)")
            self._push(dict(kind='salu'))
            self.lg = self.lg[len(self.lg) - 13:]

    def ds_read(self, op, d, n, addr, off):
        assert 0 <= off < 65536, off
        D = rng(d, n)
        self._lg_room()
        self._emit(f"{op} {vr(d,n)}, v{addr} offset:{off}", dict(kind='ds', w=D, r={addr}))
        self.lg.append(D)

    def ds_write128(self, addr, data, off, acc=False):
        assert 0 <= off < 65536
        D = rng(data + (ACC if acc else 0), 4)
        self._lg_room()
        self._emit(f"ds_write_b128 v{addr}, {vr(data,4,acc)} offset:{off}",
                   dict(kind='ds', r={addr} | D, w=set()))
        self.lg.append(set())

    def bload(self, d, n, voff, srd, soff, off=0, tag=None):
        op = {1: 'buffer_load_dword', 2: 'buffer_load_dwordx2', 4: 'buffer_load_dwordx4'}[n]
        assert 0 <= off < 4096
        D = rng(d, n)
        o = f" offset:{off}" if off else ""
        self._emit(f"{op} {vr(d,n)}, v{voff}, s[{srd}:{srd+3}], {soff} offen{o}",
                   dict(kind='vmem', w=D, r={voff}))
        self.vm.append((tag, D))

    def dma(self, voff, srd, soff, tag=None, off=0):
        o = f" offset:{off}" if off else ""
        self._emit(f"buffer_load_dwordx4 v{voff}, s[{srd}:{srd+3}], {soff} offen{o} lds",
                   dict(kind='dma', r={voff}, w=set()))
        self.vm.append((tag, set()))

    def bstore(self, data, n, voff, srd, soff, off=0):
        op = {1: 'buffer_store_dword', 2: 'buffer_store_dwordx2', 4: 'buffer_store_dwordx4'}[n]
        assert 0 <= off < 4096
        D = rng(data, n)
        o = f" offset:{off}" if off else ""
        self._emit(f"{op} {vr(data,n)}, v{voff}, s[{srd}:{srd+3}], {soff} offen{o}",
                   dict(kind='vmem', r={voff} | D, w=set(), wide=(n >= 3), data=D))
        self.vm.append((None, set()))

    def barrier(self):
        self.salu("s_barrier")


def interleave(slots, fillers):
    total = sum(c for c, _ in fillers)
    n = len(slots)
    fi = 0
    acc = 0.0
    for i, s in enumerate(slots):
        s()
        target = total * (i + 1) / n
        while fi < len(fillers) and (acc + fillers[fi][0] * 0.5 <= target or i == n - 1):
            acc += fillers[fi][0]
            fillers[fi][1]()
            fi += 1
    assert fi == len(fillers)
```

```python
import math
import struct
import sys
from emit import E, interleave, vr, rng

NAME = "concat_heads__gqa_block_cached__gqa_block_cached__near_ridge"
K1 = NAME + "_kernel"
K2 = "concat_oproj_kernel"


def f32bits(x):
    return struct.unpack("<I", struct.pack("<f", x))[0]


C_SCALE = math.log2(math.e) / math.sqrt(128.0)
T_RAW = 8.0 / C_SCALE

O = 0
QF = 64
SB = [96, 128]
KF = 160
VF = 192
KADDR = 224
VADDR = 232
VKD = 236
VVD = 237
VM = 238
VMC = 239
VL0 = 240
VL1 = 241
VMX = 242
VT0 = 243
VT1 = 244
VWD = 245
VX = 246
WADDR = 247
T = [251, 252, 253, 254, 255]

SRD_K, SRD_V, SRD_W, SRD_X, SRD_O = 4, 8, 12, 16, 20
S_W1K, S_C, S_T, S_CNT = 24, 25, 26, 27
S_KO, S_KO2, S_VO, S_VO2 = 28, 29, 30, 31
S_TMP = 32
S_TMP2 = 33
S_WID = 34

LDS_K = 0
LDS_V = 65536
LDS_W = 98304


def load_ptrs(e):
    e.salu("s_load_dwordx16 s[36:51], s[0:1], 0")
    e.salu("s_load_dwordx4 s[52:55], s[0:1], 64")
    e.salu("s_load_dwordx2 s[56:57], s[0:1], 80")
    e.salu("s_load_dwordx2 s[58:59], s[0:1], 96")


def sel_ptr(e, dst, a, b):
    e.salu(f"s_cselect_b32 s{dst}, s{a}, s{b}")
    e.salu(f"s_cselect_b32 s{dst+1}, s{a+1}, s{b+1}")


def gen_k1():
    e = E()
    rare = []
    e.raw(f".globl {K1}")
    e.raw(".p2align 8")
    e.raw(f".type {K1},@function")
    e.label(K1)
    e.salu("s_cmp_ge_u32 s2, 512")
    e.salu("s_cbranch_scc1 L1_exit")
    load_ptrs(e)
    e.salu("s_and_b32 s60, s2, 7")
    e.salu("s_lshr_b32 s61, s2, 3")
    e.salu("s_and_b32 s62, s61, 1")
    e.salu("s_lshl_b32 s60, s60, 1")
    e.salu("s_add_u32 s60, s60, s62")
    e.salu("s_lshr_b32 s62, s61, 1")
    e.salu("s_and_b32 s62, s62, 15")
    e.salu("s_lshr_b32 s61, s61, 5")
    tid, lane, t0, t1, t2 = T
    e.valu(f"v_mov_b32 v{tid}, v0", w=[tid], r=[0])
    e.valu(f"v_lshrrev_b32 v{t0}, 6, v{tid}", w=[t0], r=[tid])
    e.valu(f"v_and_b32 v{lane}, 63, v{tid}", w=[lane], r=[tid])
    e.rdlane(f"v_readfirstlane_b32 s{S_WID}, v{t0}", r=[t0], sw=[S_WID])
    e.salu(f"s_mov_b32 s{S_C}, 0x{f32bits(C_SCALE):08x}")
    e.salu(f"s_mov_b32 s{S_T}, 0x{f32bits(T_RAW):08x}")
    e.salu("s_waitcnt lgkmcnt(0)")
    e.salu("s_cmp_eq_u32 s61, 0")
    sel_ptr(e, SRD_X, 36, 46)
    sel_ptr(e, SRD_K, 38, 48)
    sel_ptr(e, SRD_V, 40, 50)
    sel_ptr(e, SRD_W, 42, 52)
    e.salu("s_lshl_b32 s63, s62, 4")
    e.salu("s_add_u32 s63, s63, s60")
    e.salu("s_lshl_b32 s64, s63, 18")
    e.salu(f"s_add_u32 s{SRD_K}, s{SRD_K}, s64")
    e.salu(f"s_addc_u32 s{SRD_K+1}, s{SRD_K+1}, 0")
    e.salu(f"s_add_u32 s{SRD_V}, s{SRD_V}, s64")
    e.salu(f"s_addc_u32 s{SRD_V+1}, s{SRD_V+1}, 0")
    e.salu(f"s_mov_b32 s{SRD_K+2}, 262144")
    e.salu(f"s_mov_b32 s{SRD_K+3}, 0x00020000")
    e.salu(f"s_mov_b32 s{SRD_V+2}, 262144")
    e.salu(f"s_mov_b32 s{SRD_V+3}, 0x00020000")
    e.salu(f"s_mov_b32 s{SRD_W+2}, 4718592")
    e.salu(f"s_mov_b32 s{SRD_W+3}, 0x00020000")
    e.salu("s_mul_i32 s64, s62, 147456")
    e.salu(f"s_add_u32 s{SRD_X}, s{SRD_X}, s64")
    e.salu(f"s_addc_u32 s{SRD_X+1}, s{SRD_X+1}, 0")
    e.salu(f"s_mov_b32 s{SRD_X+2}, 147456")
    e.salu(f"s_mov_b32 s{SRD_X+3}, 0x00020000")
    e.salu(f"s_lshr_b32 s65, s{S_WID}, 2")
    e.salu(f"s_and_b32 s66, s{S_WID}, 3")
    e.salu(f"s_lshl_b32 s{S_W1K}, s{S_WID}, 10")
    e.salu("s_lshl_b32 s67, s61, 4")
    e.salu("s_add_u32 s67, s67, s62")
    e.salu("s_lshl_b32 s67, s67, 2")
    e.salu("s_add_u32 s67, s67, s66")
    e.salu("s_lshl_b32 s67, s67, 5")
    e.salu("s_lshl_b32 s68, s60, 1")
    e.salu("s_add_u32 s68, s68, s65")
    e.salu("s_add_u32 s67, s67, s68")
    e.salu("s_lshl_b32 s67, s67, 13")
    e.salu(f"s_add_u32 s{SRD_O}, s58, s67")
    e.salu(f"s_addc_u32 s{SRD_O+1}, s59, 0")
    e.salu(f"s_mov_b32 s{SRD_O+2}, 8192")
    e.salu(f"s_mov_b32 s{SRD_O+3}, 0x00020000")

    l32, half, i16, g = VT0, VT1, VL0, VL1
    r_, c4, dhalf = VM, VMC, VMX
    e.valu(f"v_and_b32 v{l32}, 31, v{lane}", w=[l32], r=[lane])
    e.valu(f"v_lshrrev_b32 v{half}, 5, v{lane}", w=[half], r=[lane])
    e.valu(f"v_and_b32 v{i16}, 15, v{lane}", w=[i16], r=[lane])
    e.valu(f"v_lshrrev_b32 v{g}, 4, v{lane}", w=[g], r=[lane])
    e.valu(f"v_lshrrev_b32 v{r_}, 2, v{i16}", w=[r_], r=[i16])
    e.valu(f"v_and_b32 v{c4}, 3, v{i16}", w=[c4], r=[i16])
    e.valu(f"v_and_b32 v{dhalf}, 1, v{g}", w=[dhalf], r=[g])
    e.valu(f"v_and_b32 v{t0}, 15, v{l32}", w=[t0], r=[l32])
    e.valu(f"v_xor_b32 v{t0}, v{t0}, v{half}", w=[t0], r=[t0, half])
    e.valu(f"v_lshlrev_b32 v{t0}, 4, v{t0}", w=[t0], r=[t0])
    e.valu(f"v_lshl_add_u32 v{KADDR}, v{l32}, 8, v{t0}", w=[KADDR], r=[l32, t0])
    for ks in range(1, 8):
        e.valu(f"v_xor_b32 v{KADDR+ks}, {ks*32}, v{KADDR}", w=[KADDR + ks], r=[KADDR])
    e.valu(f"v_lshlrev_b32 v{t1}, 6, v{r_}", w=[t1], r=[r_])
    e.valu(f"v_lshl_add_u32 v{t1}, v{dhalf}, 5, v{t1}", w=[t1], r=[dhalf, t1])
    e.valu(f"v_lshl_add_u32 v{t1}, v{c4}, 3, v{t1}", w=[t1], r=[c4, t1])
    e.valu(f"v_lshl_add_u32 v{t0}, v{half}, 2, v{r_}", w=[t0], r=[half, r_])
    e.valu(f"v_lshl_add_u32 v{t0}, v{t0}, 8, v{t1}", w=[t0], r=[t0, t1])
    e.valu(f"v_add_u32 v{VADDR}, {LDS_V}, v{t0}", w=[VADDR], r=[t0])
    for dt in range(1, 4):
        e.valu(f"v_xor_b32 v{VADDR+dt}, {dt*64}, v{VADDR}", w=[VADDR + dt], r=[VADDR])
    e.valu(f"v_lshl_add_u32 v{t0}, v{half}, 4, v{r_}", w=[t0], r=[half, r_])
    e.valu(f"v_lshl_add_u32 v{t0}, v{t0}, 9, v{t1}", w=[t0], r=[t0, t1])
    e.salu("s_lshl_b32 s69, s65, 8")
    e.salu(f"s_add_u32 s69, s69, {LDS_W}")
    e.valu(f"v_add_u32 v{WADDR}, s69, v{t0}", w=[WADDR], r=[t0])
    for dt in range(1, 4):
        e.valu(f"v_xor_b32 v{WADDR+dt}, {dt*64}, v{WADDR}", w=[WADDR + dt], r=[WADDR])
    e.salu(f"s_lshl_b32 s69, s{S_WID}, 2")
    e.valu(f"v_add_u32 v{t0}, s69, v{g}", w=[t0], r=[g])
    e.valu(f"v_and_b32 v{t1}, 15, v{t0}", w=[t1], r=[t0])
    e.valu(f"v_xor_b32 v{t1}, v{t1}, v{i16}", w=[t1], r=[t1, i16])
    e.valu(f"v_lshlrev_b32 v{t1}, 4, v{t1}", w=[t1], r=[t1])
    e.valu(f"v_lshl_add_u32 v{VKD}, v{t0}, 8, v{t1}", w=[VKD], r=[t0, t1])
    e.valu(f"v_lshlrev_b32 v{t1}, 2, v{g}", w=[t1], r=[g])
    e.valu(f"v_xor_b32 v{t1}, v{t1}, v{i16}", w=[t1], r=[t1, i16])
    e.valu(f"v_lshlrev_b32 v{t1}, 4, v{t1}", w=[t1], r=[t1])
    e.valu(f"v_lshl_add_u32 v{VVD}, v{t0}, 8, v{t1}", w=[VVD], r=[t0, t1])
    e.salu(f"s_lshl_b32 s69, s{S_WID}, 1")
    e.valu(f"v_add_u32 v{t0}, s69, v{half}", w=[t0], r=[half])
    e.valu(f"v_and_b32 v{t1}, 3, v{t0}", w=[t1], r=[t0])
    e.valu(f"v_lshlrev_b32 v{t1}, 2, v{t1}", w=[t1], r=[t1])
    e.valu(f"v_xor_b32 v{t1}, v{t1}, v{l32}", w=[t1], r=[t1, l32])
    e.valu(f"v_lshlrev_b32 v{t1}, 4, v{t1}", w=[t1], r=[t1])
    e.valu(f"v_lshl_add_u32 v{t1}, v{t0}, 13, v{t1}", w=[t1], r=[t0, t1])
    e.salu("s_lshl_b32 s69, s60, 9")
    e.valu(f"v_add_u32 v{VWD}, s69, v{t1}", w=[VWD], r=[t1])
    e.salu("s_lshl_b32 s69, s66, 5")
    e.valu(f"v_add_u32 v{t0}, s69, v{l32}", w=[t0], r=[l32])
    e.valu(f"v_mul_u32_u24 v{t0}, 1152, v{t0}", w=[t0], r=[t0])
    e.valu(f"v_lshl_add_u32 v{VX}, v{half}, 5, v{t0}", w=[VX], r=[half, t0])

    def dma_w(ci):
        slot = ci % 4
        for p in range(2):
            e.salu(f"s_add_u32 m0, s{S_W1K}, {LDS_W + slot*16384 + p*8192}", m0=True)
            e.salu(f"s_mov_b32 s{S_TMP}, {ci*32*8192 + p*131072}")
            e.dma(VWD, SRD_W, f"s{S_TMP}", tag=('w', ci))

    def load_x(ci):
        xb = SB[0] + (ci % 4) * 8
        for i in range(2):
            e.bload(xb + 4 * i, 4, VX, SRD_X, "0", off=ci * 64 + i * 16, tag=('x', ci))

    def dma_kv_imm(which, tile, p):
        base = (LDS_K if which == 'K' else LDS_V) + (tile % 4) * 16384 + p * 8192
        e.salu(f"s_add_u32 m0, s{S_W1K}, {base}", m0=True)
        e.salu(f"s_mov_b32 s{S_TMP2}, {tile*16384 + p*8192}")
        e.dma(VKD if which == 'K' else VVD, SRD_K if which == 'K' else SRD_V, f"s{S_TMP2}",
              tag=(which, tile))

    def w_reads(ci, fb):
        lst = []
        slot = ci % 4
        for i in range(2):
            for dt in range(4):
                for s in range(2):
                    d = fb + (i * 4 + dt) * 4 + 2 * s
                    off = slot * 16384 + i * 4096 + s * 2048
                    lst.append((1, lambda d=d, dt=dt, off=off: e.ds_read("ds_read_b64_tr_b16", d, 2, WADDR + dt, off)))
        return lst

    for ci in range(4):
        dma_w(ci)
    for ci in range(3):
        load_x(ci)
    kvq = [('K', 0, 0), ('K', 0, 1), ('K', 1, 0), ('K', 1, 1), ('V', 0, 0), ('V', 0, 1),
           ('K', 2, 0), ('K', 2, 1), ('V', 1, 0), ('V', 1, 1), ('K', 3, 0), ('K', 3, 1)]
    e.wait_vm_tag(('w', 0))
    e.barrier()
    for c, f in w_reads(0, KF):
        f()
    NCH = 18
    for ci in range(NCH):
        fb = KF if ci % 2 == 0 else VF
        fbn = VF if ci % 2 == 0 else KF
        if ci + 1 < NCH:
            e.wait_vm_tag(('w', ci + 1))
        e.wait_lgkm0()
        e.barrier()
        if ci + 4 < NCH:
            dma_w(ci + 4)
        if ci + 3 < NCH:
            load_x(ci + 3)
        if ci < 12:
            dma_kv_imm(*kvq[ci])
        if ci == 16:
            dma_kv_imm('V', 2, 0)
            dma_kv_imm('V', 2, 1)
        xb = SB[0] + (ci % 4) * 8
        slots = []
        for i in range(2):
            for dt in range(4):
                first = (ci == 0 and i == 0)
                slots.append(lambda i=i, dt=dt, first=first: e.mfma32(
                    O + 16 * dt, fb + (i * 4 + dt) * 4, xb + 4 * i, 0 if first else None))
        fill = w_reads(ci + 1, fbn) if ci + 1 < NCH else []
        if fill:
            interleave(slots, fill)
        else:
            for s in slots:
                s()
    for dt in range(4):
        for jj in range(2):
            q = QF + (dt * 2 + jj) * 4
            a = O + dt * 16 + jj * 8
            for k in range(4):
                e.valu(f"v_cvt_pk_bf16_f32 v{q+k}, v{a+2*k}, v{a+2*k+1}", w=[q + k], r=[a + 2 * k, a + 2 * k + 1])
    for dt in range(4):
        for jj in range(2):
            q = QF + (dt * 2 + jj) * 4
            e.perm(q, q + 2)
            e.perm(q + 1, q + 3)
    for i in range(64):
        e.valu(f"v_mov_b32 v{O+i}, 0", w=[O + i])
    e.valu(f"v_mov_b32 v{VM}, 0xff800000", w=[VM])
    e.valu(f"v_mov_b32 v{VMC}, 0", w=[VMC])
    e.valu(f"v_mov_b32 v{VL0}, 0", w=[VL0])
    e.valu(f"v_mov_b32 v{VL1}, 0", w=[VL1])
    e.salu(f"s_mov_b32 s{S_KO}, {4*16384}")
    e.salu(f"s_mov_b32 s{S_KO2}, {4*16384+8192}")
    e.salu(f"s_mov_b32 s{S_VO}, {3*16384}")
    e.salu(f"s_mov_b32 s{S_VO2}, {3*16384+8192}")

    def k_read(tile, u, ks):
        e.ds_read("ds_read_b128", KF + ks * 4, 4, KADDR + ks, (tile % 4) * 16384 + u * 8192)

    def v_read(tile, j, dt, s):
        d = VF + ((j % 2) * 4 + dt) * 4 + 2 * s
        e.ds_read("ds_read_b64_tr_b16", d, 2, VADDR + dt, (tile % 4) * 16384 + j * 4096 + s * 2048)

    def qk(tile, u, ks):
        S = SB[tile % 2] + 16 * u
        e.mfma32(S, KF + ks * 4, QF + ks * 4, 0 if ks == 0 else None)

    def pv(tile, j, dt):
        P = SB[tile % 2] + 4 * j
        e.mfma32(O + 16 * dt, VF + ((j % 2) * 4 + dt) * 4, P, None)

    def max_chain(tile):
        S = SB[tile % 2]
        lst = []
        lst.append((1, lambda: e.valu(f"v_max3_f32 v{VMX}, v{S}, v{S+1}, v{S+2}", w=[VMX], r=[S, S + 1, S + 2])))
        lst.append((1, lambda: e.valu(f"v_max3_f32 v{VT1}, v{S+3}, v{S+4}, v{S+5}", w=[VT1], r=[S + 3, S + 4, S + 5])))
        i = 6
        tog = 0
        while i < 32:
            acc = VMX if tog == 0 else VT1
            if i + 1 < 32:
                lst.append((1, lambda acc=acc, i=i: e.valu(f"v_max3_f32 v{acc}, v{acc}, v{S+i}, v{S+i+1}",
                                                           w=[acc], r=[acc, S + i, S + i + 1])))
                i += 2
            else:
                lst.append((1, lambda acc=acc, i=i: e.valu(f"v_max_f32 v{acc}, v{acc}, v{S+i}", w=[acc], r=[acc, S + i])))
                i += 1
            tog ^= 1
        lst.append((1, lambda: e.valu(f"v_max_f32 v{VMX}, v{VMX}, v{VT1}", w=[VMX], r=[VMX, VT1])))
        lst.append((1, lambda: e.valu(f"v_mov_b32 v{VT0}, v{VMX}", w=[VT0], r=[VMX])))
        lst.append((1, lambda: e.perm(VMX, VT0)))
        lst.append((1, lambda: e.valu(f"v_max_f32 v{VMX}, v{VMX}, v{VT0}", w=[VMX], r=[VMX, VT0])))
        lst.append((1, lambda: e.valu(f"v_sub_f32 v{VT0}, v{VMX}, v{VM}", w=[VT0], r=[VMX, VM])))
        lst.append((1, lambda: e.valu(f"v_cmp_lt_f32 vcc, s{S_T}, v{VT0}", r=[VT0], sw=['vcc'])))
        return lst

    def softmax_groups(tile, g0, g1):
        S = SB[tile % 2]
        lst = []
        for gidx in range(g0, g1):
            b = S + 4 * gidx
            for k in range(4):
                lst.append((1, lambda b=b, k=k: e.valu(f"v_fma_f32 v{b+k}, v{b+k}, s{S_C}, -v{VMC}",
                                                       w=[b + k], r=[b + k, VMC])))
            for k in range(4):
                lst.append((2, lambda b=b, k=k: e.trans(f"v_exp_f32 v{b+k}, v{b+k}", w=[b + k], r=[b + k])))
            for k in range(4):
                l = VL0 if k % 2 == 0 else VL1
                lst.append((1, lambda b=b, k=k, l=l: e.valu(f"v_add_f32 v{l}, v{l}, v{b+k}", w=[l], r=[l, b + k])))
            for k in range(2):
                d = S + 2 * gidx + k
                lst.append((1, lambda b=b, k=k, d=d: e.valu(f"v_cvt_pk_bf16_f32 v{d}, v{b+2*k}, v{b+2*k+1}",
                                                            w=[d], r=[b + 2 * k, b + 2 * k + 1])))
        return lst

    def rare_block(name, back):
        r = E()
        r.label(name)
        r.nop(16)
        r.valu(f"v_max_f32 v{VT1}, v{VM}, v{VMX}", w=[VT1], r=[VM, VMX])
        r.valu(f"v_sub_f32 v{VT0}, v{VM}, v{VT1}", w=[VT0], r=[VM, VT1])
        r.valu(f"v_mul_f32 v{VT0}, s{S_C}, v{VT0}", w=[VT0], r=[VT0])
        r.trans(f"v_exp_f32 v{VT0}, v{VT0}", w=[VT0], r=[VT0])
        r.valu(f"v_mov_b32 v{VM}, v{VT1}", w=[VM], r=[VT1])
        r.valu(f"v_mul_f32 v{VMC}, s{S_C}, v{VT1}", w=[VMC], r=[VT1])
        r.valu(f"v_mul_f32 v{VL0}, v{VL0}, v{VT0}", w=[VL0], r=[VL0, VT0])
        r.valu(f"v_mul_f32 v{VL1}, v{VL1}, v{VT0}", w=[VL1], r=[VL1, VT0])
        for i in range(64):
            r.valu(f"v_mul_f32 v{O+i}, v{O+i}, v{VT0}", w=[O + i], r=[O + i, VT0])
        r.nop(2)
        r.salu(f"s_branch {back}")
        rare.append(r)

    body_id = [0]

    def body(t, pv_tail=True, has_qk=True, has_next=True, dma=True, vmwait=8, barrier=True):
        bid = body_id[0]
        body_id[0] += 1
        if barrier:
            e.wait_lgkm0()
            if vmwait is not None:
                e.wait_vm_n(vmwait)
            e.barrier()
        if dma:
            for p in range(2):
                e.salu(f"s_add_u32 m0, s{S_W1K}, {LDS_K + ((t+5) % 4)*16384 + p*8192}", m0=True)
                e.salu(f"s_nop 0")
                e.dma(VKD, SRD_K, f"s{S_KO if p == 0 else S_KO2}", tag='kv')
            for p in range(2):
                e.salu(f"s_add_u32 m0, s{S_W1K}, {LDS_V + ((t+4) % 4)*16384 + p*8192}", m0=True)
                e.salu(f"s_nop 0")
                e.dma(VVD, SRD_V, f"s{S_VO if p == 0 else S_VO2}", tag='kv')
            for s in (S_KO, S_KO2, S_VO, S_VO2):
                e.salu(f"s_add_u32 s{s}, s{s}, 16384")
        if has_qk:
            for ks in range(8):
                k_read(t + 2, 0, ks)
        fill = max_chain(t + 1) if has_next else []
        if pv_tail:
            slots = [lambda j=j, dt=dt: pv(t, j, dt) for j in (2, 3) for dt in range(4)]
            if fill:
                interleave(slots, fill)
            else:
                for s in slots:
                    s()
        else:
            for c, f in fill:
                f()
        if not has_next:
            return
        nm, back = f"L1_rare{bid}", f"L1_back{bid}"
        e.salu(f"s_cbranch_vccnz {nm}")
        e.label(back)
        rare_block(nm, back)
        vreads01 = [(0.5, lambda j=j, dt=dt, s=s: v_read(t + 1, j, dt, s))
                    for j in (0, 1) for dt in range(4) for s in range(2)]
        if has_qk:
            sm = softmax_groups(t + 1, 0, 6)
            slots = []
            for u in range(2):
                for ks in range(8):
                    def sl(u=u, ks=ks):
                        qk(t + 2, u, ks)
                        if u == 0:
                            k_read(t + 2, 1, ks)
                    slots.append(sl)
            n1 = len(sm) * 2 // 3
            fill = sm[:n1]
            rest = sm[n1:]
            k = 0
            for it in rest:
                fill.append(it)
                if k < len(vreads01):
                    fill.append(vreads01[k])
                    k += 1
            fill += vreads01[k:]
            interleave(slots, fill)
            g_next = 6
        else:
            for c, f in vreads01:
                f()
            for c, f in softmax_groups(t + 1, 0, 4):
                f()
            g_next = 4
        slots = []
        for j in (0, 1):
            for dt in range(4):
                def sl(j=j, dt=dt):
                    pv(t + 1, j, dt)
                    v_read(t + 1, j + 2, dt, 0)
                    v_read(t + 1, j + 2, dt, 1)
                slots.append(sl)
        interleave(slots, softmax_groups(t + 1, g_next, 8))

    e.wait_vm_tag(('K', 0))
    e.barrier()
    for u in range(2):
        for ks in range(8):
            k_read(0, u, ks) if u == 0 else None
    for ks in range(8):
        qk(0, 0, ks)
        k_read(0, 1, ks)
    for ks in range(8):
        qk(0, 1, ks)
    body(-1 + 4, pv_tail=False)
    e.salu(f"s_mov_b32 s{S_CNT}, 3")
    e.label("L1_loop")
    for t in range(4):
        body(t)
    e.salu(f"s_sub_u32 s{S_CNT}, s{S_CNT}, 1")
    e.salu(f"s_cmp_lg_u32 s{S_CNT}, 0")
    e.salu("s_cbranch_scc1 L1_loop")
    body(12, dma=False, vmwait=8)
    body(13, dma=False, vmwait=4)
    body(14, dma=False, vmwait=0, has_qk=False)
    body(15, dma=False, has_qk=False, has_next=False, barrier=False)

    e.valu(f"v_add_f32 v{VL0}, v{VL0}, v{VL1}", w=[VL0], r=[VL0, VL1])
    e.valu(f"v_mov_b32 v{VT0}, v{VL0}", w=[VT0], r=[VL0])
    e.perm(VL0, VT0)
    e.valu(f"v_add_f32 v{VL0}, v{VL0}, v{VT0}", w=[VL0], r=[VL0, VT0])
    e.trans(f"v_rcp_f32 v{VL0}, v{VL0}", w=[VL0], r=[VL0])
    e.valu(f"v_lshlrev_b32 v{T[1]}, 4, v{T[1]}", w=[T[1]], r=[T[1]])
    e.salu(f"s_mov_b32 s{S_TMP}, 4096")
    for dt in range(4):
        for jj in range(2):
            a = O + dt * 16 + jj * 8
            d = SB[0] + (dt * 2 + jj) * 4
            for k in range(8):
                e.valu(f"v_mul_f32 v{a+k}, v{a+k}, v{VL0}", w=[a + k], r=[a + k, VL0])
            for k in range(4):
                e.valu(f"v_cvt_pk_bf16_f32 v{d+k}, v{a+2*k}, v{a+2*k+1}", w=[d + k], r=[a + 2 * k, a + 2 * k + 1])
            e.perm(d, d + 2)
            e.perm(d + 1, d + 3)
            jp = dt * 2 + jj
            e.bstore(d, 4, T[1], SRD_O, "0" if jp < 4 else f"s{S_TMP}", off=(jp % 4) * 1024)
    e.label("L1_exit")
    e.salu("s_endpgm")
    for r in rare:
        e.out += r.out
    return e


def gen_k2():
    e = E()
    e.raw(f".globl {K2}")
    e.raw(".p2align 8")
    e.raw(f".type {K2},@function")
    e.label(K2)
    e.salu("s_cmp_ge_u32 s2, 256")
    e.salu("s_cbranch_scc1 L2_exit")
    load_ptrs(e)
    e.salu("s_and_b32 s60, s2, 7")
    e.salu("s_lshr_b32 s61, s2, 3")
    e.salu("s_and_b32 s62, s61, 3")
    e.salu("s_lshr_b32 s61, s61, 2")
    e.salu("s_lshl_b32 s60, s60, 3")
    e.salu("s_add_u32 s60, s60, s61")
    e.salu("s_lshr_b32 s61, s60, 5")
    SO, SW, SOUT = 4, 8, 12
    S_WB, S_KS_O, S_KS_W, S_CN, S_WV = 24, 25, 26, 27, 28
    BF = 0
    AF = [64, 100]
    VO = [136, 137]
    VW = 138
    VA = 147
    tid, lane, t0, t1, t2, t3 = 148, 149, 150, 151, 152, 153
    e.valu(f"v_mov_b32 v{tid}, v0", w=[tid], r=[0])
    e.valu(f"v_lshrrev_b32 v{t0}, 6, v{tid}", w=[t0], r=[tid])
    e.valu(f"v_and_b32 v{lane}, 63, v{tid}", w=[lane], r=[tid])
    e.rdlane(f"v_readfirstlane_b32 s{S_WV}, v{t0}", r=[t0], sw=[S_WV])
    e.salu("s_waitcnt lgkmcnt(0)")
    e.salu("s_cmp_eq_u32 s61, 0")
    sel_ptr(e, SW, 44, 54)
    e.salu(f"s_mov_b32 s{SW+2}, 4718592")
    e.salu(f"s_mov_b32 s{SW+3}, 0x00020000")
    e.salu("s_lshl_b32 s63, s60, 19")
    e.salu(f"s_add_u32 s{SO}, s58, s63")
    e.salu(f"s_addc_u32 s{SO+1}, s59, 0")
    e.salu(f"s_mov_b32 s{SO+2}, 524288")
    e.salu(f"s_mov_b32 s{SO+3}, 0x00020000")
    e.salu(f"s_mov_b32 s{SOUT}, s56")
    e.salu(f"s_mov_b32 s{SOUT+1}, s57")
    e.salu(f"s_mov_b32 s{SOUT+2}, 4718592")
    e.salu(f"s_mov_b32 s{SOUT+3}, 0x00020000")
    e.salu(f"s_mul_i32 s{S_WB}, s{S_WV}, 36864")
    e.salu(f"s_lshl_b32 s{S_KS_O}, s{S_WV}, 16")
    e.salu(f"s_mul_i32 s{S_KS_W}, s{S_WV}, {32*36864}")
    e.valu(f"v_lshrrev_b32 v{t0}, 5, v{lane}", w=[t0], r=[lane])
    e.valu(f"v_lshlrev_b32 v{t0}, 10, v{t0}", w=[t0], r=[t0])
    e.valu(f"v_bfe_u32 v{t1}, v{lane}, 4, 1", w=[t1], r=[lane])
    e.valu(f"v_lshl_add_u32 v{t0}, v{t1}, 9, v{t0}", w=[t0], r=[t1, t0])
    e.valu(f"v_and_b32 v{t1}, 15, v{lane}", w=[t1], r=[lane])
    e.valu(f"v_lshl_add_u32 v{VO[0]}, v{t1}, 4, v{t0}", w=[VO[0]], r=[t1, t0])
    e.valu(f"v_add_u32 v{VO[1]}, 262144, v{VO[0]}", w=[VO[1]], r=[VO[0]])
    e.salu("s_mul_i32 s63, s62, 288")
    e.salu("s_mov_b32 s64, 0xe38e38e4")
    for i in range(9):
        e.valu(f"v_add_u32 v{t0}, {i*64}, v{lane}", w=[t0], r=[lane])
        e.valu(f"v_mul_hi_u32 v{t1}, v{t0}, s64", w=[t1], r=[t0])
        e.valu(f"v_lshrrev_b32 v{t1}, 4, v{t1}", w=[t1], r=[t1])
        e.valu(f"v_mul_u32_u24 v{t2}, 18, v{t1}", w=[t2], r=[t1])
        e.valu(f"v_sub_u32 v{t2}, v{t0}, v{t2}", w=[t2], r=[t0, t2])
        e.valu(f"v_mul_u32_u24 v{t1}, 1152, v{t1}", w=[t1], r=[t1])
        e.valu(f"v_lshl_add_u32 v{t1}, v{t2}, 4, v{t1}", w=[t1], r=[t2, t1])
        e.valu(f"v_add_u32 v{VW+i}, s63, v{t1}", w=[VW + i], r=[t1])
    e.valu(f"v_lshrrev_b32 v{t0}, 4, v{lane}", w=[t0], r=[lane])
    e.valu(f"v_bfe_u32 v{t1}, v{lane}, 2, 2", w=[t1], r=[lane])
    e.valu(f"v_lshl_add_u32 v{t0}, v{t0}, 3, v{t1}", w=[t0], r=[t0, t1])
    e.valu(f"v_mul_u32_u24 v{t0}, 288, v{t0}", w=[t0], r=[t0])
    e.valu(f"v_and_b32 v{t1}, 3, v{lane}", w=[t1], r=[lane])
    e.valu(f"v_lshl_add_u32 v{t0}, v{t1}, 3, v{t0}", w=[t0], r=[t1, t0])
    e.valu(f"v_add_u32 v{VA}, s{S_WB}, v{t0}", w=[VA], r=[t0])

    SWO, SOO = 30, 31

    def pf_w(slot):
        lst = []
        for i in range(9):
            def f(i=i):
                e.salu(f"s_add_u32 m0, s{S_WB}, {slot*9216 + i*1024}", m0=True)
                e.salu("s_nop 0")
                e.dma(VW + i, SW, f"s{SWO}", tag='w')
            lst.append((1, f))
        lst.append((0.2, lambda: e.salu(f"s_add_u32 s{SWO}, s{SWO}, 36864")))
        return lst

    def pf_o(rb):
        lst = []
        for m4 in range(4):
            lst.append((1, lambda m4=m4: e.bload(BF + rb * 16 + m4 * 4, 4, VO[m4 // 2], SO, f"s{SOO}",
                                                 off=(m4 % 2) * 256, tag='o')))
        lst.append((0.2, lambda: e.salu(f"s_add_u32 s{SOO}, s{SOO}, 2048")))
        return lst

    def a_reads(slot, ab):
        lst = []
        for nn in range(9):
            for s in range(2):
                lst.append((1, lambda nn=nn, s=s: e.ds_read("ds_read_b64_tr_b16", ab + nn * 4 + 2 * s, 2, VA,
                                                            slot * 9216 + s * 1152 + nn * 32)))
        return lst

    e.salu(f"s_mov_b32 s{SWO}, s{S_KS_W}")
    e.salu(f"s_mov_b32 s{SOO}, s{S_KS_O}")
    for c, f in pf_w(0):
        f()
    for k in range(1, 4):
        for c, f in pf_w(k):
            f()
        for c, f in pf_o(k - 1):
            f()
    e.wait_vm_n(39)
    for c, f in a_reads(0, AF[0]):
        f()

    def kstep(ks, first=False, pf=True, vmw=26, nxt=True):
        e.comment(f"---- kstep {ks % 4}")
        e.wait_lgkm0(force=True)
        if vmw is not None:
            e.wait_vm_n(vmw)
        ab = AF[ks % 2]
        abn = AF[(ks + 1) % 2]
        rb = ks % 4
        fill = []
        if pf:
            fill += pf_w(ks % 4) + pf_o((ks + 3) % 4)
        if nxt:
            fill += a_reads((ks + 1) % 4, abn)
        slots = []
        for nn in range(9):
            for m4 in range(4):
                slots.append(lambda nn=nn, m4=m4: e.mfma16a((nn * 4 + m4) * 4, ab + nn * 4, BF + rb * 16 + m4 * 4,
                                                            zero=first))
        if fill:
            interleave(slots, fill)
        else:
            for s in slots:
                s()

    e.vm = [(t, set()) for t, d in e.vm]
    kstep(0, first=True)
    e.vm = [(t, set()) for t, d in e.vm]
    kstep(1)
    e.vm = [(t, set()) for t, d in e.vm]
    kstep(2)
    e.vm = [(t, set()) for t, d in e.vm]
    kstep(3)
    e.vm = [(t, set()) for t, d in e.vm]
    e.salu(f"s_mov_b32 s{S_CN}, 6")
    e.label("L2_loop")
    for k in range(4):
        kstep(k)
        e.vm = [(t, set()) for t, d in e.vm]
    e.salu(f"s_sub_u32 s{S_CN}, s{S_CN}, 1")
    e.salu(f"s_cmp_lg_u32 s{S_CN}, 0")
    e.salu("s_cbranch_scc1 L2_loop")
    e.wait_lgkm0(force=True)
    e.wait_vm_n(26)
    def tail_k(ks, fill):
        ab = AF[ks % 2]
        rb = ks % 4
        slots = [lambda nn=nn, m4=m4: e.mfma16a((nn * 4 + m4) * 4, ab + nn * 4, BF + rb * 16 + m4 * 4)
                 for nn in range(9) for m4 in range(4)]
        if fill:
            interleave(slots, fill)
        else:
            for s in slots:
                s()
    tail_k(28, pf_o(31 % 4) + a_reads(29 % 4, AF[1]))
    e.vm = [(t, set()) for t, d in e.vm]
    e.wait_lgkm0(force=True)
    e.wait_vm_n(17)
    tail_k(29, a_reads(30 % 4, AF[0]))
    e.wait_lgkm0(force=True)
    e.wait_vm_n(4)
    tail_k(30, a_reads(31 % 4, AF[1]))
    e.wait_lgkm0(force=True)
    e.wait_vm_n(0)
    tail_k(31, [])
    e.valu(f"v_lshlrev_b32 v{t0}, 4, v{lane}", w=[t0], r=[lane])
    e.valu(f"v_add_u32 v{t1}, s{S_WB}, v{t0}", w=[t1], r=[t0])
    e.nop(8)
    for tl in range(36):
        e.ds_write128(t1, tl * 4, tl * 1024, acc=True)
        if len(e.lg) >= 14:
            e.wait_lgkm0()
    e.wait_lgkm0(force=True)
    e.barrier()
    e.salu(f"s_lshl_b32 s63, s{S_WV}, 10")
    e.valu(f"v_add_u32 v{t0}, s63, v{t0}", w=[t0], r=[t0])
    ad = [t0, t1, t2, t3]
    for k in range(1, 4):
        e.valu(f"v_add_u32 v{ad[k]}, {k*36864}, v{t0}", w=[ad[k]], r=[t0])
    e.salu("s_and_b32 s63, s60, 31")
    e.salu("s_lshl_b32 s63, s63, 6")
    e.salu(f"s_lshl_b32 s64, s{S_WV}, 4")
    e.salu("s_add_u32 s63, s63, s64")
    vo = VA
    e.valu(f"v_and_b32 v{vo}, 15, v{lane}", w=[vo], r=[lane])
    e.valu(f"v_add_u32 v{vo}, s63, v{vo}", w=[vo], r=[vo])
    e.valu(f"v_mul_u32_u24 v{vo}, 2304, v{vo}", w=[vo], r=[vo])
    e.valu(f"v_lshrrev_b32 v{VW}, 4, v{lane}", w=[VW], r=[lane])
    e.valu(f"v_lshl_add_u32 v{vo}, v{VW}, 3, v{vo}", w=[vo], r=[VW, vo])
    e.salu("s_mul_i32 s63, s61, 1152")
    e.salu("s_mul_i32 s64, s62, 288")
    e.salu("s_add_u32 s63, s63, s64")
    e.valu(f"v_add_u32 v{vo}, s63, v{vo}", w=[vo], r=[vo])
    for nn in range(9):
        base = (nn % 3) * 16
        for k in range(4):
            e.ds_read("ds_read_b128", base + k * 4, 4, ad[k], nn * 4096)
        if nn % 3 == 2 or nn == 8:
            for n2 in range(nn - 2, nn + 1):
                b2 = (n2 % 3) * 16
                for c in range(4):
                    e.valu(f"v_add_f32 v{b2+c}, v{b2+c}, v{b2+4+c}", w=[b2 + c], r=[b2 + c, b2 + 4 + c])
                    e.valu(f"v_add_f32 v{b2+8+c}, v{b2+8+c}, v{b2+12+c}", w=[b2 + 8 + c], r=[b2 + 8 + c, b2 + 12 + c])
                for c in range(4):
                    e.valu(f"v_add_f32 v{b2+c}, v{b2+c}, v{b2+8+c}", w=[b2 + c], r=[b2 + c, b2 + 8 + c])
                d = 64 + n2 * 2
                e.valu(f"v_cvt_pk_bf16_f32 v{d}, v{b2}, v{b2+1}", w=[d], r=[b2, b2 + 1])
                e.valu(f"v_cvt_pk_bf16_f32 v{d+1}, v{b2+2}, v{b2+3}", w=[d + 1], r=[b2 + 2, b2 + 3])
                e.bstore(d, 2, vo, SOUT, "0", off=n2 * 32)
    e.label("L2_exit")
    e.salu("s_endpgm")
    return e


HEADER = open('cdna_kernels/' + NAME + '.s.ref').read().split('; Override launch geometry')[0]


def kd(name, vgpr, accum, sgpr=102):
    return f""".amdhsa_kernel {name}
  .amdhsa_next_free_vgpr {vgpr}
  .amdhsa_next_free_sgpr {sgpr}
  .amdhsa_accum_offset {accum}
  .amdhsa_group_segment_fixed_size 0
  .amdhsa_kernarg_size 104
  .amdhsa_user_sgpr_count 2
  .amdhsa_user_sgpr_kernarg_segment_ptr 1
  .amdhsa_system_sgpr_workgroup_id_x 1
.end_amdhsa_kernel
"""


def main(path):
    e1 = gen_k1()
    e2 = gen_k2()
    s = HEADER
    s += f"; @launch kernel={K1} grid=(512,1,1) block=(512,1,1) lds=163840\n"
    s += f"; @launch kernel={K2} grid=(256,1,1) block=(256,1,1) lds=147456\n"
    s += '.amdgcn_target "amdgcn-amd-amdhsa--gfx950"\n.text\n'
    s += "\n".join(e1.out) + "\n"
    s += "\n".join(e2.out) + "\n"
    s += '.section .rodata,"a"\n.p2align 6\n'
    s += kd(K1, 256, 256, 80)
    s += '.p2align 6\n'
    s += kd(K2, 156 + 144, 156, 80)
    open(path, 'w').write(s)
    print("k1 lines", len(e1.out), "nops", e1.nops, "| k2 lines", len(e2.out), "nops", e2.nops)


if __name__ == "__main__":
    main(sys.argv[1] if len(sys.argv) > 1 else 'cdna_kernels/' + NAME + '.s')
```
